```python
import torch

def _softmax(x, axis=-1):
    return torch.softmax(x, dim=axis)
def _gelu(x):
    return torch.nn.functional.gelu(x, approximate="tanh")
def _silu(x):
    return torch.nn.functional.silu(x)
def _sigmoid(x):
    return torch.sigmoid(x)
def _layernorm(x, axis=-1, eps=1e-5):
    m = x.mean(dim=axis, keepdim=True)
    v = x.var(dim=axis, keepdim=True, unbiased=False)
    return (x - m) / torch.sqrt(v + eps)
def _scatter_add(tgt, idx, src, axis=0):
    return tgt.clone().index_add_(axis, idx, src)
def _segment_sum(src, seg, n):
    out = torch.zeros((n,) + src.shape[1:], dtype=src.dtype)
    return out.index_add_(0, seg, src)
def _pad(x, pw):
    flat = tuple(v for pair in reversed(pw) for v in pair)
    return torch.nn.functional.pad(x, flat)

kernel_name = 'parallel_sum__gqa_block_cached__glu_gated_swiglu__decode'

def setup_inputs():

    _w = (lambda a: (lambda t: t.to(torch.bfloat16) if t.is_floating_point() else t)(torch.as_tensor(a)))
    def _A_setup():
        B, Sq, D = 1, 1, 512
        Hq, Hkv, Sk, Dh = 32, 8, 65536, 128
        assert Hq % Hkv == 0, (Hq, Hkv)
        return {
            "x": _w((lambda *s: torch.randn(*s, dtype=torch.bfloat16) * 0.05)(B, Sq, D)),
            "k_cache": _w((lambda *s: torch.randn(*s, dtype=torch.bfloat16) * 3.2)(B, Hkv, Sk, Dh)),
            "v_cache": _w((lambda *s: torch.randn(*s, dtype=torch.bfloat16) * 1.6)(B, Hkv, Sk, Dh)),
            "wq": _w((lambda *s: torch.randn(*s, dtype=torch.bfloat16) * 3.2)(D, Hq * Dh) * (D ** -0.5)),
            "wo": _w((lambda *s: torch.randn(*s, dtype=torch.bfloat16) * 1.6)(Hq * Dh, D) * ((Hq * Dh) ** -0.5)),
        }
    _A_in = _A_setup()

    def _B_setup():
        B, S, D, F = 1, 1, 512, 1792
        return {
            "x": _w((lambda *s: torch.randn(*s, dtype=torch.bfloat16) * 0.05)(B, S, D)),
            "w1": _w((lambda *s: torch.randn(*s, dtype=torch.bfloat16) * 1.6)(D, F) * (2.0 / D) ** 0.5),
            "w3": _w((lambda *s: torch.randn(*s, dtype=torch.bfloat16) * 1.6)(D, F) * (2.0 / D) ** 0.5),
            "w2": _w((lambda *s: torch.randn(*s, dtype=torch.bfloat16) * 1.6)(F, D) * (2.0 / F) ** 0.5),
        }
    _B_in = _B_setup()

    return {
        "A_x": _A_in["x"],
        "A_k_cache": _A_in["k_cache"],
        "A_v_cache": _A_in["v_cache"],
        "A_wq": _A_in["wq"],
        "A_wo": _A_in["wo"],
        "B_x": _B_in["x"],
        "B_w1": _B_in["w1"],
        "B_w3": _B_in["w3"],
        "B_w2": _B_in["w2"],
    }

def reference(A_x, A_k_cache, A_v_cache, A_wq, A_wo, B_x, B_w1, B_w3, B_w2):
    def _A_ref(x, k_cache, v_cache, wq, wo):
        B, Sq, D = x.shape
        Hq, Dh = 32, 128
        Hkv = k_cache.shape[1]
        rep = Hq // Hkv
        q = (lambda x, *d: x.permute(*d))((x @ wq).reshape(B, Sq, Hq, Dh), 0, 2, 1, 3)
        k = (lambda x, n, axis: torch.repeat_interleave(x, n, dim=axis))(k_cache, rep, axis=1)
        v = (lambda x, n, axis: torch.repeat_interleave(x, n, dim=axis))(v_cache, rep, axis=1)
        scores = torch.einsum("bhqd,bhkd->bhqk", q, k) * (Dh ** -0.5)
        p = _softmax(scores, axis=-1)
        o = torch.einsum("bhqk,bhkd->bhqd", p, v)
        return (lambda x, *d: x.permute(*d))(o, 0, 2, 1, 3).reshape(B, Sq, Hq * Dh) @ wo

    def _B_ref(x, w1, w3, w2):
        gate = torch.einsum("bsd,df->bsf", x, w1)
        up = torch.einsum("bsd,df->bsf", x, w3)
        h = _silu(gate) * up
        out = torch.einsum("bsf,fd->bsd", h, w2)
        return out

    x = A_x
    xn = _layernorm(x, axis=-1)
    return x + _A_ref(xn, A_k_cache, A_v_cache, A_wq, A_wo) + _B_ref(xn, B_w1, B_w3, B_w2)
```

```python
import re

REG_RE = re.compile(r'^(-|abs\()?([vsa])(\d+|\[(\d+):(\d+)\])\)?$')

def parse_regs(tok):
    tok = tok.strip()
    if tok in ('vcc',): return [('s', 'vcc_lo'), ('s', 'vcc_hi')]
    if tok in ('vcc_lo', 'vcc_hi', 'm0', 'scc'): return [('s', tok)]
    if tok == 'exec': return [('s', 'exec_lo'), ('s', 'exec_hi')]
    if tok in ('exec_lo', 'exec_hi'): return [('s', tok)]
    m = REG_RE.match(tok)
    if not m: return []
    k = m.group(2)
    if m.group(4) is not None:
        return [(k, i) for i in range(int(m.group(4)), int(m.group(5)) + 1)]
    return [(k, int(m.group(3)))]

TRANS = ('v_exp_f32', 'v_log_f32', 'v_rcp_f32', 'v_rsq_f32', 'v_sqrt_f32', 'v_sin_f32', 'v_cos_f32', 'v_rcp_iflag_f32')

class Ins:
    __slots__ = ('text', 'op', 'kind', 'dst', 'src', 'states', 'passes', 'srcc', 'srcab', 'dpp', 'wide_store')

class Asm:
    def __init__(self):
        self.lines = []
        self.hist = []
        self.max_v = 0
        self.max_s = 0

    def raw(self, s):
        self.lines.append(s)

    def comment(self, s):
        self.lines.append('    ; ' + s)

    def label(self, name):
        self.flush()
        self.lines.append(name + ':')

    def flush(self):
        need = 0
        dist = 0
        for ins in reversed(self.hist):
            worst = 0
            if ins.kind == 'mfma': worst = {2: 5, 4: 8, 8: 12, 16: 20}[ins.passes]
            elif ins.kind in ('valu', 'trans'): worst = 5
            elif ins.wide_store: worst = 2
            elif ins.kind == 'salu': worst = 1
            need = max(need, worst - dist)
            dist += ins.states
            if dist > 24: break
        if need > 0:
            self._nop(need)
        self.hist = []

    def _nop(self, n):
        while n > 0:
            k = min(n, 16)
            i = Ins(); i.text = f's_nop {k-1}'; i.op = 's_nop'; i.kind = 'nop'; i.dst = []; i.src = []
            i.states = k; i.passes = 0; i.srcc = []; i.srcab = []; i.dpp = False; i.wide_store = False
            self.lines.append('    ' + i.text); self.hist.append(i)
            n -= k

    def __call__(self, text):
        text = text.strip()
        code = text.split(';')[0].strip()
        parts = code.split(None, 1)
        op = parts[0]
        rest = parts[1] if len(parts) > 1 else ''
        mo = re.search(r'offset:(\d+)', rest)
        if mo and op.startswith('buffer'):
            assert int(mo.group(1)) < 4096, text
        if mo and op.startswith('ds_'):
            assert int(mo.group(1)) < 65536, text
        ops = [o.strip() for o in rest.split(',')] if rest else []
        toks = []
        for o in ops:
            toks.append(o.split()[0] if o else o)
        i = Ins(); i.text = text; i.op = op; i.states = 1; i.passes = 0; i.srcc = []; i.srcab = []
        i.dpp = ('row_' in rest or 'quad_perm' in rest or 'wave_' in rest or 'row_bcast' in rest)
        i.wide_store = False
        R = [parse_regs(t) for t in toks]
        flat = lambda l: [x for y in l for x in y]
        if op == 's_nop':
            i.kind = 'nop'; i.dst = []; i.src = []; i.states = int(rest) + 1
        elif op.startswith('v_mfma'):
            i.kind = 'mfma'; i.dst = R[0]; i.srcab = R[1] + R[2]; i.srcc = R[3] if len(R) > 3 else []
            i.src = i.srcab + i.srcc
            i.passes = 4 if '16x16x32' in op else 8 if '32x32x16' in op else None
            assert i.passes
        elif op.startswith('v_permlane') and 'swap' in op:
            i.kind = 'valu'; i.dst = R[0] + R[1]; i.src = R[0] + R[1]
        elif op.startswith('v_cmp'):
            i.kind = 'valu'; i.dst = R[0]; i.src = flat(R[1:])
            if op.startswith('v_cmpx'): i.dst = i.dst + parse_regs('exec')
        elif op in ('v_add_co_u32', 'v_sub_co_u32', 'v_addc_co_u32'):
            i.kind = 'valu'; i.dst = R[0] + R[1]; i.src = flat(R[2:])
        elif op.startswith('v_'):
            i.kind = 'trans' if op.replace('_e32', '').replace('_e64', '') in TRANS else 'valu'
            i.dst = R[0]; i.src = flat(R[1:])
            if op.startswith('v_fmac') or op.startswith('v_dot2c') or i.dpp or op.startswith('v_writelane'): i.src = i.src + R[0]
        elif op.startswith('buffer_load') or op.startswith('global_load'):
            i.kind = 'vmem'; i.dst = R[0]; i.src = flat(R[1:])
        elif op.startswith('buffer_store') or op.startswith('buffer_atomic'):
            i.kind = 'vmem'; i.dst = R[0] if (op.startswith('buffer_atomic') and ' sc0' in rest) else []; i.src = flat(R)
            i.wide_store = ('x4' in op or 'x3' in op)
        elif op.startswith('global_store') or op.startswith('global_atomic'):
            i.kind = 'vmem'
            if op.startswith('global_atomic') and ' sc0' in rest:
                i.dst = R[0]; i.src = flat(R[1:])
            else:
                i.dst = []; i.src = flat(R)
            i.wide_store = ('x4' in op or 'x3' in op)
        elif op.startswith('ds_read') or op.startswith('ds_bpermute') or op.startswith('ds_swizzle') or op.endswith('_rtn_u32') or op.endswith('_rtn_f32'):
            i.kind = 'ds'; i.dst = R[0]; i.src = flat(R[1:])
        elif op.startswith('ds_'):
            i.kind = 'ds'; i.dst = []; i.src = flat(R)
        elif op.startswith('s_load') or op.startswith('s_buffer_load'):
            i.kind = 'smem'; i.dst = R[0]; i.src = flat(R[1:])
        elif op in ('s_waitcnt', 's_barrier', 's_endpgm', 's_setprio', 's_sleep', 'buffer_wbl2', 'buffer_inv') :
            i.kind = 'misc'; i.dst = []; i.src = []
        elif op.startswith('s_cbranch') or op == 's_branch':
            self.flush()
            i.kind = 'misc'; i.dst = []; i.src = []
        elif op.startswith('s_cmp'):
            i.kind = 'salu'; i.dst = []; i.src = flat(R)
        elif op.startswith('s_'):
            i.kind = 'salu'; i.dst = R[0]; i.src = flat(R[1:])
            if 'saveexec' in op: i.dst = i.dst + parse_regs('exec')
        else:
            raise ValueError('unknown op ' + text)
        for (k, n) in i.dst + i.src:
            if k == 'v': self.max_v = max(self.max_v, n)
            if k == 's' and isinstance(n, int): self.max_s = max(self.max_s, n)
        need = 0
        dist = 0
        sd = set(i.dst); ss = set(i.src)
        is_valu = i.kind in ('valu', 'trans')
        for p in reversed(self.hist):
            req = 0
            pd = set(p.dst)
            if p.kind in ('valu', 'trans'):
                vw = {r for r in pd if r[0] in 'va'}
                sw = {r for r in pd if r[0] == 's'}
                if i.kind == 'mfma' and vw & ss: req = max(req, 2)
                if i.kind == 'mfma' and (('s', 'exec_lo') in pd): req = max(req, 4)
                if is_valu and (i.op.startswith('v_permlane') or i.dpp) and vw & ss: req = max(req, 2)
                if is_valu and (i.op.startswith('v_readfirstlane') or i.op.startswith('v_readlane')) and vw & ss: req = max(req, 1)
                if p.kind == 'trans' and is_valu and i.kind != 'trans' and vw & (ss | sd): req = max(req, 1)
                if p.kind == 'trans' and i.kind in ('vmem', 'ds', 'mfma') and vw & ss: req = max(req, 2)
                if sw & ss:
                    if is_valu: req = max(req, 4 if (i.op.startswith('v_readlane') or i.op.startswith('v_writelane')) else 2)
                    if i.kind == 'vmem': req = max(req, 5)
                    if i.kind in ('salu', 'smem'): req = max(req, 1)
                if (('s', 'exec_lo') in pd) and is_valu: req = max(req, 5)
            elif p.kind == 'mfma':
                tab_ab = {2: 5, 4: 8, 8: 12, 16: 20}[p.passes]
                tab_c = {2: 4, 4: 6, 8: 10, 16: 18}[p.passes]
                if i.kind == 'mfma':
                    if pd & set(i.srcab): req = max(req, tab_ab)
                    if pd & set(i.srcc):
                        if list(p.dst) == list(i.srcc) and p.passes == i.passes: req = max(req, 0 if p.passes >= 4 else 2)
                        else: req = max(req, tab_c)
                    elif pd & sd: req = max(req, tab_ab)
                else:
                    if pd & (ss | sd): req = max(req, tab_ab)
                    if is_valu and set(p.srcc) & sd: req = max(req, {2: 1, 4: 3, 8: 7, 16: 15}[p.passes])
            elif p.kind == 'vmem' and p.wide_store:
                if sd & set(p.src): req = max(req, 2)
            elif p.kind == 'salu':
                if ('s', 'm0') in pd and (i.kind in ('ds', 'vmem')): req = max(req, 1)
            need = max(need, req - dist)
            dist += p.states
            if dist > 24: break
        if need > 0: self._nop(need)
        self.lines.append('    ' + text)
        self.hist.append(i)
        if len(self.hist) > 64: self.hist = self.hist[-40:]

    def text(self):
        return '\n'.join(self.lines) + '\n'
```

```python
import sys
sys.path.insert(0, 'gen')
from asmlib import Asm

NAME = 'parallel_sum__gqa_block_cached__glu_gated_swiglu__decode'
WS_Q = 0
WS_H = 8192
WS_ML = 16384
WS_O = 32768
WS_PART = 0x100000
WS_SIZE = 536870912
LOG2E = 0x3fb8aa3b
SCALE = 0x3db504f3

HEADER = open('cdna_kernels/%s.s.ref' % NAME).read().split('; Override launch geometry')[0]

def kd(name, nv, ns):
    nv = max(nv, 8)
    return f'''.section .rodata,"a"
.p2align 6
.amdhsa_kernel {name}
  .amdhsa_next_free_vgpr {nv}
  .amdhsa_next_free_sgpr {ns}
  .amdhsa_accum_offset {(nv+3)//4*4}
  .amdhsa_group_segment_fixed_size 0
  .amdhsa_kernarg_size 96
  .amdhsa_user_sgpr_count 2
  .amdhsa_user_sgpr_kernarg_segment_ptr 1
  .amdhsa_system_sgpr_workgroup_id_x 1
.end_amdhsa_kernel
.text
'''

def begin(a, name):
    a.raw(f'.globl {name}'); a.raw('.p2align 8'); a.raw(f'.type {name},@function'); a.raw(f'{name}:')

def srd(a, d, lo, hi, size):
    a(f's_mov_b32 s{d}, s{lo}'); a(f's_and_b32 s{d+1}, s{hi}, 0xffff'); a(f's_mov_b32 s{d+2}, {size:#x}'); a(f's_mov_b32 s{d+3}, 0x20000')

def bf16r(a, d, s):
    a(f'v_cvt_pk_bf16_f32 v{d}, v{s}, v{s}'); a(f'v_lshlrev_b32 v{d}, 16, v{d}')

def wave_allreduce(a, op, v, t1, t2):
    for r in (1, 2, 4, 8):
        a(f'{op}_dpp v{v}, v{v}, v{v} row_ror:{r} row_mask:0xf bank_mask:0xf')
    xrow_reduce(a, op, v, t1)

def xrow_reduce(a, op, v, t1):
    a(f'v_mov_b32 v{t1}, v{v}'); a(f'v_permlane16_swap_b32 v{v}, v{t1}'); a(f'{op} v{v}, v{v}, v{t1}')
    a(f'v_mov_b32 v{t1}, v{v}'); a(f'v_permlane32_swap_b32 v{v}, v{t1}'); a(f'{op} v{v}, v{v}, v{t1}')

def layernorm(a, sx, vl, vx, vt):
    a(f'v_lshlrev_b32 v{vt}, 4, v{vl}')
    a(f'buffer_load_dwordx4 v[{vt+4}:{vt+7}], v{vt}, s[{sx}:{sx+3}], 0 offen')
    a('s_waitcnt vmcnt(0)')
    for k in range(4):
        a(f'v_lshlrev_b32 v{vx+2*k}, 16, v{vt+4+k}'); a(f'v_and_b32 v{vx+2*k+1}, 0xffff0000, v{vt+4+k}')
    s = vt; t1 = vt + 1; t2 = vt + 2; mean = vt + 3; var = vt + 8; d = vt + 9
    a(f'v_add_f32 v{s}, v{vx}, v{vx+1}')
    for k in range(2, 8): a(f'v_add_f32 v{s}, v{s}, v{vx+k}')
    wave_allreduce(a, 'v_add_f32', s, t1, t2)
    a(f'v_mul_f32 v{mean}, 0x3b000000, v{s}')
    a(f'v_sub_f32 v{d}, v{vx}, v{mean}'); a(f'v_mul_f32 v{var}, v{d}, v{d}')
    for k in range(1, 8):
        a(f'v_sub_f32 v{d}, v{vx+k}, v{mean}'); a(f'v_fmac_f32 v{var}, v{d}, v{d}')
    wave_allreduce(a, 'v_add_f32', var, t1, t2)
    a(f'v_mul_f32 v{var}, 0x3b000000, v{var}')
    bf16r(a, var, var); bf16r(a, mean, mean)
    a(f'v_add_f32 v{var}, 0x3727c5ac, v{var}')
    bf16r(a, var, var)
    a(f'v_sqrt_f32 v{var}, v{var}')
    bf16r(a, var, var)
    a(f'v_rcp_f32 v{t1}, v{var}')
    for k in range(8):
        x = vx + k
        a(f'v_sub_f32 v{x}, v{x}, v{mean}'); bf16r(a, x, x)
        a(f'v_mul_f32 v{d}, v{x}, v{t1}')
        a(f'v_fma_f32 v{t2}, -v{d}, v{var}, v{x}')
        a(f'v_fma_f32 v{x}, v{t2}, v{t1}, v{d}')
        bf16r(a, x, x)

def gen_prep(a):
    name = 'prep_kernel'
    begin(a, name)
    a('s_cmp_ge_u32 s2, 184'); a('s_cbranch_scc1 P_end')
    a('s_load_dwordx2 s[4:5], s[0:1], 0')
    a('s_load_dwordx2 s[6:7], s[0:1], 24')
    a('s_load_dwordx4 s[8:11], s[0:1], 48')
    a('s_load_dwordx2 s[12:13], s[0:1], 88')
    a('v_and_b32 v1, 63, v0'); a('v_lshrrev_b32 v2, 6, v0'); a('v_readfirstlane_b32 s3, v2')
    a('s_waitcnt lgkmcnt(0)')
    srd(a, 16, 4, 5, 1024); srd(a, 32, 12, 13, WS_SIZE)
    a('s_cmp_ge_u32 s2, 128'); a('s_cbranch_scc1 P_ffn')
    srd(a, 20, 6, 7, 4194304); srd(a, 24, 6, 7, 4194304)
    a('s_mov_b32 s28, 8192'); a('s_lshl_b32 s29, s2, 6'); a('s_branch P_go')
    a.label('P_ffn')
    srd(a, 20, 8, 9, 1835008); srd(a, 24, 10, 11, 1835008)
    a('s_mov_b32 s28, 3584'); a('s_sub_u32 s29, s2, 128'); a('s_lshl_b32 s29, s29, 6')
    a.label('P_go')
    a('s_lshl_b32 s30, s3, 6')
    a('v_lshrrev_b32 v3, 2, v1'); a('v_add_u32 v3, s30, v3')
    a('v_mul_lo_u32 v4, v3, s28'); a('v_and_b32 v5, 3, v1'); a('v_lshlrev_b32 v5, 4, v5'); a('v_add3_u32 v4, v4, v5, s29')
    a('s_lshl_b32 s31, s28, 4')
    a('s_mov_b32 s36, 0'); a('s_mov_b32 s37, s31'); a('s_lshl_b32 s38, s31, 1'); a('s_mul_i32 s39, s31, 3')
    for i in range(4):
        a(f'buffer_load_dwordx4 v[{32+4*i}:{35+4*i}], v4, s[20:23], s{36+i} offen')
    a('s_cmp_ge_u32 s2, 128'); a('s_cbranch_scc0 P_noB')
    for i in range(4):
        a(f'buffer_load_dwordx4 v[{48+4*i}:{51+4*i}], v4, s[24:27], s{36+i} offen')
    a.label('P_noB')
    layernorm(a, 16, 1, 8, 16)
    a('s_lshl_b32 s30, s3, 11')
    a('v_lshlrev_b32 v6, 5, v1'); a('v_add_u32 v6, s30, v6')
    a('ds_write_b128 v6, v[8:11]'); a('ds_write_b128 v6, v[12:15] offset:16')
    a('v_lshlrev_b32 v7, 2, v3'); a('v_add_u32 v7, s30, v7')
    a('s_waitcnt lgkmcnt(0)')
    for i in range(4): a(f'ds_read_b32 v{16+i}, v7 offset:{64*i}')
    a('s_waitcnt lgkmcnt(0)')
    def gemv(src, acc):
        for i in range(4):
            for k in range(4):
                r = src + 4 * i + k
                a(f'v_lshlrev_b32 v20, 16, v{r}'); a(f'v_and_b32 v21, 0xffff0000, v{r}')
                if i == 0:
                    a(f'v_mul_f32 v{acc+2*k}, v20, v{16+i}'); a(f'v_mul_f32 v{acc+2*k+1}, v21, v{16+i}')
                else:
                    a(f'v_fmac_f32 v{acc+2*k}, v20, v{16+i}'); a(f'v_fmac_f32 v{acc+2*k+1}, v21, v{16+i}')
        for k in range(8):
            for r in (4, 8):
                a(f'v_add_f32_dpp v{acc+k}, v{acc+k}, v{acc+k} row_ror:{r} row_mask:0xf bank_mask:0xf')
    gemv(32, 64)
    a('s_cmp_ge_u32 s2, 128'); a('s_cbranch_scc0 P_noB2')
    gemv(48, 72)
    a.label('P_noB2')
    a('v_lshrrev_b32 v20, 4, v1'); a('s_lshl_b32 s30, s3, 2'); a('v_add_u32 v20, s30, v20'); a('v_lshlrev_b32 v20, 7, v20')
    a('v_and_b32 v21, 15, v1'); a('v_lshlrev_b32 v22, 5, v21'); a('v_add_u32 v20, v20, v22')
    a('v_cmp_gt_u32 vcc, 4, v21'); a('s_and_saveexec_b64 s[40:41], vcc')
    a('ds_write_b128 v20, v[64:67] offset:16384'); a('ds_write_b128 v20, v[68:71] offset:16400')
    a('ds_write_b128 v20, v[72:75] offset:20480'); a('ds_write_b128 v20, v[76:79] offset:20496')
    a('s_mov_b64 exec, s[40:41]')
    a('s_waitcnt lgkmcnt(0)'); a('s_barrier')
    a('s_cmp_lg_u32 s3, 0'); a('s_cbranch_scc1 P_end')
    a('v_cmp_gt_u32 vcc, 32, v1'); a('s_and_saveexec_b64 s[40:41], vcc')
    a('v_lshlrev_b32 v20, 2, v1')
    for half in range(2):
        for k in range(16):
            a(f'ds_read_b32 v{32+k}, v20 offset:{16384+(half*16+k)*128}')
            a(f'ds_read_b32 v{48+k}, v20 offset:{20480+(half*16+k)*128}')
        a('s_waitcnt lgkmcnt(0)')
        for k in range(16):
            if half == 0 and k == 0:
                a('v_mov_b32 v22, v32'); a('v_mov_b32 v23, v48')
            else:
                a(f'v_add_f32 v22, v22, v{32+k}'); a(f'v_add_f32 v23, v23, v{48+k}')
    a('s_cmp_ge_u32 s2, 128'); a('s_cbranch_scc1 P_ffn2')
    a('v_cvt_pk_bf16_f32 v22, v22, v22')
    a('v_lshlrev_b32 v20, 1, v1'); a('v_add_u32 v20, s29, v20')
    a(f'buffer_store_short v22, v20, s[32:35], 0 offen offset:{WS_Q}')
    a('s_branch P_end')
    a.label('P_ffn2')
    bf16r(a, 22, 22); bf16r(a, 23, 23)
    a(f'v_mul_f32 v24, 0xbfb8aa3b, v22'); a('v_exp_f32 v24, v24'); a('v_add_f32 v24, 1.0, v24')
    a('v_rcp_f32 v25, v24')
    a('v_mul_f32 v26, v22, v25'); a('v_fma_f32 v27, -v26, v24, v22'); a('v_fma_f32 v26, v27, v25, v26')
    bf16r(a, 26, 26)
    a('v_mul_f32 v26, v26, v23'); a('v_cvt_pk_bf16_f32 v26, v26, v26')
    a('v_lshlrev_b32 v20, 1, v1'); a('v_add_u32 v20, s29, v20'); a(f'v_add_u32 v20, {WS_H}, v20')
    a('buffer_store_short v26, v20, s[32:35], 0 offen')
    a.label('P_end')
    a('s_endpgm')
    return name

def gen_attn(a):
    name = 'attn_kernel'
    begin(a, name)
    NT = 8
    a('s_cmp_ge_u32 s2, 256'); a('s_cbranch_scc1 A_end')
    a('s_load_dwordx4 s[4:7], s[0:1], 8')
    a('s_load_dwordx2 s[12:13], s[0:1], 88')
    a('v_and_b32 v1, 63, v0'); a('v_lshrrev_b32 v2, 6, v0'); a('v_readfirstlane_b32 s3, v2')
    a('s_and_b32 s14, s2, 7'); a('s_lshr_b32 s15, s2, 3')
    a('s_waitcnt lgkmcnt(0)')
    srd(a, 16, 4, 5, 0x8000000); srd(a, 20, 6, 7, 0x8000000); srd(a, 24, 12, 13, WS_SIZE)
    a('s_lshl_b32 s28, s14, 24'); a('s_lshl_b32 s29, s15, 3'); a('s_add_u32 s29, s29, s3'); a('s_lshl_b32 s29, s29, 13'); a('s_add_u32 s28, s28, s29')
    a('v_and_b32 v2, 15, v1'); a('v_lshrrev_b32 v3, 4, v1')
    a('v_and_b32 v4, 3, v2'); a('v_lshlrev_b32 v4, 2, v4'); a('v_lshrrev_b32 v5, 2, v2'); a('v_add_u32 v4, v4, v5')
    a('v_lshlrev_b32 v4, 8, v4'); a('v_lshlrev_b32 v5, 4, v3'); a('v_add_u32 v4, v4, v5')
    a('v_add_u32 v5, 4096, v4')
    a('v_lshlrev_b32 v6, 4, v1'); a('v_add_u32 v7, 4096, v6')
    KR = [64, 96]; VR = [128, 160]
    QF = 192; OA = 208; S = 240; P = 248; VT = 16
    M = 8; Lr = 9; T1 = 10; T2 = 11; T3 = 12; M2 = 13; AL = 14; T4 = 15
    X = 48
    def loadK(i):
        b = KR[i & 1]
        a(f's_add_u32 s30, s28, {i*0x200000}')
        for T in range(2):
            for j in range(4):
                r = b + 16 * T + 4 * j
                a(f'buffer_load_dwordx4 v[{r}:{r+3}], v{4+T}, s[16:19], s30 offen offset:{64*j} nt')
    def loadV(i):
        b = VR[i & 1]
        a(f's_add_u32 s31, s28, {i*0x200000}')
        for e in range(8):
            r = b + 4 * e
            a(f'buffer_load_dwordx4 v[{r}:{r+3}], v{6+(e>>2)}, s[20:23], s31 offen offset:{1024*(e&3)} nt')
    a('s_lshl_b32 s30, s14, 10')
    a('v_lshlrev_b32 v10, 8, v2'); a('v_lshlrev_b32 v11, 4, v3'); a('v_add3_u32 v10, v10, v11, s30')
    a('v_cmp_gt_u32 vcc, 4, v2'); a('v_mov_b32 v11, 0x7fffffff'); a('v_cndmask_b32 v10, v11, v10, vcc')
    for j in range(4):
        a(f'buffer_load_dwordx4 v[{QF+4*j}:{QF+4*j+3}], v10, s[24:27], 0 offen offset:{WS_Q+64*j}')
    loadK(0); loadV(0); loadK(1); loadV(1)
    a('s_mov_b32 s32, 0x05040100'); a('s_mov_b32 s33, 0x07060302'); a(f's_mov_b32 s34, {LOG2E:#x}'); a(f's_mov_b32 s35, {SCALE:#x}')
    a(f'v_mov_b32 v{M}, 0xff800000'); a(f'v_mov_b32 v{Lr}, 0')
    for k in range(32): a(f'v_mov_b32 v{OA+k}, 0')
    for i in range(NT):
        b = KR[i & 1]; vb = VR[i & 1]
        nK = 8 * (min(NT, i + 2) - (i + 1)) + 8 * (min(NT, i + 2) - i)
        a(f's_waitcnt vmcnt({nK})')
        for T in range(2):
            for j in range(4):
                r = b + 16 * T + 4 * j
                c = '0' if j == 0 else f'v[{S+4*T}:{S+4*T+3}]'
                a(f'v_mfma_f32_16x16x32_bf16 v[{S+4*T}:{S+4*T+3}], v[{r}:{r+3}], v[{QF+4*j}:{QF+4*j+3}], {c}')
        if i + 2 < NT: loadK(i + 2)
        for k in range(4):
            a(f'v_cvt_pk_bf16_f32 v{T1}, v{S+2*k}, v{S+2*k+1}')
            a(f'v_lshlrev_b32 v{T2}, 16, v{T1}'); a(f'v_and_b32 v{T3}, 0xffff0000, v{T1}')
            a(f'v_mul_f32 v{T2}, s35, v{T2}'); a(f'v_mul_f32 v{T3}, s35, v{T3}')
            a(f'v_cvt_pk_bf16_f32 v{T1}, v{T2}, v{T3}')
            a(f'v_lshlrev_b32 v{X+2*k}, 16, v{T1}'); a(f'v_and_b32 v{X+2*k+1}, 0xffff0000, v{T1}')
        a(f'v_max3_f32 v{T1}, v{X}, v{X+1}, v{X+2}'); a(f'v_max3_f32 v{T1}, v{T1}, v{X+3}, v{X+4}')
        a(f'v_max3_f32 v{T1}, v{T1}, v{X+5}, v{X+6}'); a(f'v_max3_f32 v{T1}, v{T1}, v{X+7}, v{M}')
        xrow_reduce(a, 'v_max_f32', T1, T2)
        a(f'v_sub_f32 v{AL}, v{M}, v{T1}'); a(f'v_mul_f32 v{AL}, s34, v{AL}'); a(f'v_exp_f32 v{AL}, v{AL}')
        a(f'v_mov_b32 v{M}, v{T1}'); a(f'v_mul_f32 v{M2}, s34, v{T1}')
        for k in range(8):
            a(f'v_fma_f32 v{X+k}, v{X+k}, s34, -v{M2}'); a(f'v_exp_f32 v{X+k}, v{X+k}')
        a(f'v_mul_f32 v{Lr}, v{Lr}, v{AL}')
        for k in range(8): a(f'v_add_f32 v{Lr}, v{Lr}, v{X+k}')
        for k in range(4): a(f'v_cvt_pk_bf16_f32 v{P+k}, v{X+2*k}, v{X+2*k+1}')
        for k in range(32): a(f'v_mul_f32 v{OA+k}, v{OA+k}, v{AL}')
        nV = 8 * (min(NT, i + 3) - (i + 1)) + 8 * (min(NT, i + 2) - (i + 1))
        a(f's_waitcnt vmcnt({nV})')
        for t in range(8):
            c = t >> 1
            for ii in range(4):
                a(f'v_perm_b32 v{VT+4*t+ii}, v{vb+4*(2*ii+1)+c}, v{vb+4*(2*ii)+c}, s{32+(t&1)}')
        if i + 2 < NT: loadV(i + 2)
        for t in range(8):
            a(f'v_mfma_f32_16x16x32_bf16 v[{OA+4*t}:{OA+4*t+3}], v[{VT+4*t}:{VT+4*t+3}], v[{P}:{P+3}], v[{OA+4*t}:{OA+4*t+3}]')
    xrow_reduce(a, 'v_add_f32', Lr, T2)
    a('s_lshl_b32 s30, s3, 4'); a('v_lshlrev_b32 v16, 2, v2'); a('v_add_u32 v16, s30, v16')
    a('v_cmp_gt_u32 vcc, 4, v1'); a('s_and_saveexec_b64 s[40:41], vcc')
    a(f'ds_write_b32 v16, v{M}')
    a('s_mov_b64 exec, s[40:41]')
    a('s_waitcnt lgkmcnt(0)'); a('s_barrier')
    a('v_and_b32 v17, 3, v2'); a('v_lshlrev_b32 v17, 2, v17')
    for w in range(8): a(f'ds_read_b32 v{20+w}, v17 offset:{16*w}')
    a('s_waitcnt lgkmcnt(0)')
    a('v_max3_f32 v18, v20, v21, v22'); a('v_max3_f32 v18, v18, v23, v24'); a('v_max3_f32 v18, v18, v25, v26'); a('v_max_f32 v18, v18, v27')
    a(f'v_sub_f32 v{AL}, v{M}, v18'); a(f'v_mul_f32 v{AL}, s34, v{AL}'); a(f'v_exp_f32 v{AL}, v{AL}')
    a(f'v_mul_f32 v{Lr}, v{Lr}, v{AL}')
    for k in range(32): a(f'v_mul_f32 v{OA+k}, v{OA+k}, v{AL}')
    a('s_lshl_b32 s30, s3, 11'); a('v_lshlrev_b32 v19, 9, v2'); a('v_lshlrev_b32 v20, 7, v3'); a('v_add3_u32 v19, v19, v20, s30')
    a('v_cmp_gt_u32 vcc, 4, v2'); a('s_and_saveexec_b64 s[40:41], vcc')
    for t in range(8):
        for r in range(4):
            a(f'ds_write_b32 v19, v{OA+4*t+r} offset:{1024+(8*r+t)*4}')
    a('s_mov_b64 exec, s[40:41]')
    a('v_cmp_gt_u32 vcc, 4, v1'); a('s_and_saveexec_b64 s[40:41], vcc')
    a(f'ds_write_b32 v16, v{Lr} offset:128')
    a('s_mov_b64 exec, s[40:41]')
    a('s_waitcnt lgkmcnt(0)'); a('s_barrier')
    a('v_lshlrev_b32 v19, 2, v0')
    for w in range(8): a(f'ds_read_b32 v{20+w}, v19 offset:{1024+2048*w}')
    a('s_waitcnt lgkmcnt(0)')
    for w in range(1, 8): a(f'v_add_f32 v20, v20, v{20+w}')
    a('v_lshrrev_b32 v21, 7, v0'); a('s_lshl_b32 s30, s14, 2'); a('v_add_u32 v21, s30, v21'); a('v_lshlrev_b32 v21, 5, v21'); a('v_add_u32 v21, s15, v21')
    a('v_lshlrev_b32 v21, 9, v21'); a('v_and_b32 v22, 127, v0'); a('v_lshlrev_b32 v22, 2, v22'); a('v_add_u32 v21, v21, v22'); a(f'v_add_u32 v21, {WS_O}, v21')
    a('buffer_store_dword v20, v21, s[24:27], 0 offen')
    a('s_cmp_lg_u32 s3, 0'); a('s_cbranch_scc1 A_end')
    for w in range(8): a(f'ds_read_b32 v{20+w}, v17 offset:{128+16*w}')
    a('s_waitcnt lgkmcnt(0)')
    for w in range(1, 8): a(f'v_add_f32 v20, v20, v{20+w}')
    a('v_mov_b32 v19, v20')
    a('s_lshl_b32 s30, s14, 2'); a('v_add_u32 v21, s30, v1'); a('v_lshlrev_b32 v21, 5, v21'); a('v_add_u32 v21, s15, v21'); a('v_lshlrev_b32 v21, 3, v21')
    a(f'v_add_u32 v21, {WS_ML}, v21')
    a('v_cmp_gt_u32 vcc, 4, v1'); a('s_and_saveexec_b64 s[40:41], vcc')
    a('buffer_store_dwordx2 v[18:19], v21, s[24:27], 0 offen')
    a.label('A_end')
    a('s_endpgm')
    return name

def gen_final(a):
    name = 'final_kernel'
    begin(a, name)
    NSLOT = 46
    a('s_cmp_ge_u32 s2, 368'); a('s_cbranch_scc1 F_end')
    a('s_load_dwordx2 s[4:5], s[0:1], 0')
    a('s_load_dwordx2 s[6:7], s[0:1], 32')
    a('s_load_dwordx4 s[8:11], s[0:1], 64')
    a('s_load_dwordx4 s[12:15], s[0:1], 80')
    a('v_and_b32 v1, 63, v0'); a('v_lshrrev_b32 v2, 6, v0'); a('v_readfirstlane_b32 s3, v2')
    a('s_and_b32 s28, s2, 7'); a('s_lshr_b32 s29, s2, 3')
    a('s_waitcnt lgkmcnt(0)')
    srd(a, 16, 4, 5, 1024); srd(a, 32, 10, 11, 1024); srd(a, 36, 12, 13, 256); srd(a, 40, 14, 15, WS_SIZE)
    a(f's_mov_b32 s34, {LOG2E:#x}')
    a('s_mov_b32 s34, 1024')
    a(f's_mov_b32 s44, {LOG2E:#x}')
    a('s_cmp_ge_u32 s29, 32'); a('s_cbranch_scc1 F_w2')
    srd(a, 20, 6, 7, 4194304); a('s_lshl_b32 s30, s29, 17'); a('s_branch F_go')
    a.label('F_w2')
    srd(a, 20, 8, 9, 1835008); a('s_sub_u32 s30, s29, 32'); a('s_lshl_b32 s30, s30, 17')
    a.label('F_go')
    a('s_lshl_b32 s31, s28, 7'); a('s_add_u32 s30, s30, s31'); a('s_lshl_b32 s31, s3, 15'); a('s_add_u32 s30, s30, s31')
    a('v_lshrrev_b32 v3, 3, v1'); a('v_lshlrev_b32 v4, 10, v3'); a('v_and_b32 v5, 7, v1'); a('v_lshlrev_b32 v5, 4, v5'); a('v_add_u32 v4, v4, v5')
    a('v_add_u32 v5, 0x2000, v4'); a('v_add_u32 v6, 0x4000, v4'); a('v_add_u32 v7, 0x6000, v4')
    for i in range(4):
        a(f'buffer_load_dwordx4 v[{32+4*i}:{35+4*i}], v{4+i}, s[20:23], s30 offen')
    a('s_cmp_ge_u32 s29, 32'); a('s_cbranch_scc1 F_h')
    a('v_and_b32 v8, 31, v1'); a('v_lshlrev_b32 v8, 3, v8'); a('s_lshl_b32 s31, s29, 8'); a(f's_add_u32 s31, s31, {WS_ML}')
    a('buffer_load_dwordx2 v[10:11], v8, s[40:43], s31 offen')
    a('v_and_b32 v9, 127, v0'); a('v_lshlrev_b32 v9, 2, v9'); a('v_lshrrev_b32 v12, 7, v0'); a('v_lshlrev_b32 v13, 13, v12'); a('v_add_u32 v9, v9, v13')
    a('s_lshl_b32 s31, s29, 14'); a(f's_add_u32 s31, s31, {WS_O}')
    a('v_add_u32 v14, 4096, v9')
    for k in range(16):
        a(f'buffer_load_dword v{48+k}, v{9 if k<8 else 14}, s[40:43], s31 offen offset:{512*(k&7)}')
    a('s_waitcnt vmcnt(16)')
    a('v_mov_b32 v16, v10')
    wave_allreduce(a, 'v_max_f32', 16, 17, 18)
    a('v_sub_f32 v17, v10, v16'); a('v_mul_f32 v17, s44, v17'); a('v_exp_f32 v17, v17')
    a('v_mul_f32 v18, v17, v11')
    wave_allreduce(a, 'v_add_f32', 18, 19, 20)
    a('v_mul_f32 v18, 0.5, v18')
    a('s_waitcnt vmcnt(0)')
    a('s_lshr_b32 s45, s3, 1'); a('s_lshl_b32 s45, s45, 4')
    for k in range(16):
        a(f's_add_u32 s46, s45, {k}')
        a(f'v_readlane_b32 s47, v17, s46')
        if k == 0: a('v_mul_f32 v19, s47, v48')
        else: a(f'v_fmac_f32 v19, s47, v{48+k}')
    a('v_lshlrev_b32 v20, 2, v0')
    a('ds_write_b32 v20, v19 offset:1024')
    a('s_waitcnt lgkmcnt(0)'); a('s_barrier')
    a('v_and_b32 v20, 127, v0'); a('v_lshlrev_b32 v20, 2, v20')
    a('ds_read_b32 v21, v20 offset:1024'); a('ds_read_b32 v22, v20 offset:1536')
    a('v_rcp_f32 v23, v18')
    a('s_waitcnt lgkmcnt(0)')
    a('v_add_f32 v21, v21, v22')
    a('v_mul_f32 v22, v21, v23'); a('v_fma_f32 v24, -v22, v18, v21'); a('v_fma_f32 v22, v24, v23, v22')
    bf16r(a, 22, 22)
    a('ds_write_b32 v20, v22')
    a('s_branch F_gemv')
    a.label('F_h')
    a('v_and_b32 v20, 127, v0'); a('v_lshlrev_b32 v21, 1, v20'); a('s_sub_u32 s31, s29, 32'); a('s_lshl_b32 s31, s31, 8'); a(f's_add_u32 s31, s31, {WS_H}')
    a('buffer_load_ushort v22, v21, s[40:43], s31 offen')
    a('v_lshlrev_b32 v20, 2, v20')
    a('s_waitcnt vmcnt(0)')
    a('v_lshlrev_b32 v22, 16, v22')
    a('ds_write_b32 v20, v22')
    a.label('F_gemv')
    a('s_waitcnt lgkmcnt(0)'); a('s_barrier')
    a('s_lshl_b32 s31, s3, 7'); a('v_lshlrev_b32 v20, 2, v3'); a('v_add_u32 v20, s31, v20')
    for i in range(4): a(f'ds_read_b32 v{16+i}, v20 offset:{32*i}')
    a('s_waitcnt vmcnt(0) lgkmcnt(0)')
    acc = 64
    for i in range(4):
        for k in range(4):
            r = 32 + 4 * i + k
            a(f'v_lshlrev_b32 v20, 16, v{r}'); a(f'v_and_b32 v21, 0xffff0000, v{r}')
            if i == 0:
                a(f'v_mul_f32 v{acc+2*k}, v20, v{16+i}'); a(f'v_mul_f32 v{acc+2*k+1}, v21, v{16+i}')
            else:
                a(f'v_fmac_f32 v{acc+2*k}, v20, v{16+i}'); a(f'v_fmac_f32 v{acc+2*k+1}, v21, v{16+i}')
    for k in range(8):
        a(f'v_add_f32_dpp v{acc+k}, v{acc+k}, v{acc+k} row_ror:8 row_mask:0xf bank_mask:0xf')
    a('v_lshrrev_b32 v20, 4, v1'); a('s_lshl_b32 s31, s3, 2'); a('v_add_u32 v20, s31, v20'); a('v_lshlrev_b32 v20, 8, v20')
    a('v_and_b32 v21, 15, v1'); a('v_lshlrev_b32 v22, 5, v21'); a('v_add_u32 v20, v20, v22')
    a('v_cmp_gt_u32 vcc, 8, v21'); a('s_and_saveexec_b64 s[48:49], vcc')
    a('ds_write_b128 v20, v[64:67] offset:2048'); a('ds_write_b128 v20, v[68:71] offset:2064')
    a('s_mov_b64 exec, s[48:49]')
    a('s_waitcnt lgkmcnt(0)'); a('s_barrier')
    a('s_cmp_lg_u32 s3, 0'); a('s_cbranch_scc1 F_end')
    a('v_lshlrev_b32 v20, 2, v1')
    for k in range(16): a(f'ds_read_b32 v{32+k}, v20 offset:{2048+256*k}')
    a('s_waitcnt lgkmcnt(0)')
    for k in range(1, 16): a(f'v_add_f32 v32, v32, v{32+k}')
    a(f's_mul_i32 s31, s28, {NSLOT}'); a('s_add_u32 s30, s31, s29'); a('s_lshl_b32 s30, s30, 8'); a(f's_add_u32 s30, s30, {WS_PART}')
    a('buffer_store_dword v32, v20, s[40:43], s30 offen sc1')
    a('s_waitcnt vmcnt(0)')
    a('v_mov_b32 v21, 1'); a('s_lshl_b32 s45, s28, 2'); a('v_mov_b32 v22, s45')
    a('v_cmp_eq_u32 vcc, 0, v1'); a('s_and_saveexec_b64 s[48:49], vcc')
    a('buffer_atomic_add v21, v22, s[36:39], 0 offen sc0 sc1')
    a('s_waitcnt vmcnt(0)')
    a('s_mov_b64 exec, s[48:49]')
    a('v_readfirstlane_b32 s45, v21')
    a(f's_cmp_lg_u32 s45, {NSLOT-1}'); a('s_cbranch_scc1 F_end')
    a('s_lshl_b32 s30, s31, 8'); a(f's_add_u32 s30, s30, {WS_PART}')
    a('v_add_u32 v21, 4096, v20'); a('v_add_u32 v22, 8192, v20')
    for k in range(NSLOT):
        a(f'buffer_load_dword v{32+k}, v{20+(k>>4)}, s[40:43], s30 offen offset:{256*(k&15)} sc1')
    a('s_lshl_b32 s45, s28, 7'); a('v_lshlrev_b32 v23, 1, v1')
    a('buffer_load_ushort v24, v23, s[16:19], s45 offen')
    a('s_waitcnt vmcnt(0)')
    for k in range(1, 32): a(f'v_add_f32 v32, v32, v{32+k}')
    for k in range(33, NSLOT): a(f'v_add_f32 v64, v64, v{32+k}')
    bf16r(a, 32, 32); bf16r(a, 64, 64)
    a('v_lshlrev_b32 v24, 16, v24')
    a('v_add_f32 v24, v24, v32'); bf16r(a, 24, 24)
    a('v_add_f32 v24, v24, v64'); a('v_cvt_pk_bf16_f32 v24, v24, v24')
    a('buffer_store_short v24, v23, s[32:35], s45 offen')
    a.label('F_end')
    a('s_endpgm')
    return name

def main(out):
    txt = HEADER
    txt += '; @launch kernel=prep_kernel grid=(184,1,1) block=(512,1,1) lds=24576\n'
    txt += '; @launch kernel=attn_kernel grid=(256,1,1) block=(512,1,1) lds=17408\n'
    txt += '; @launch kernel=final_kernel grid=(368,1,1) block=(256,1,1) lds=6144\n'
    txt += '.amdgcn_target "amdgcn-amd-amdhsa--gfx950"\n.text\n'
    for g in (gen_prep, gen_attn, gen_final):
        a = Asm()
        n = g(a)
        txt += a.text() + kd(n, a.max_v + 1, max(a.max_s + 1, 16))
    open(out, 'w').write(txt)

if __name__ == '__main__':
    main(sys.argv[1] if len(sys.argv) > 1 else f'cdna_kernels/{NAME}.s')
```

```python
import sys
sys.path.insert(0, 'gen')
from asmlib import Asm
from gen_v1 import (NAME, WS_Q, WS_H, WS_ML, WS_O, WS_PART, WS_SIZE, LOG2E, SCALE, HEADER, kd, begin, srd, bf16r,
                    wave_allreduce, xrow_reduce, gen_final)
OPT = {}

L_RED = 0; L_Q = 1024; L_TICK = 2048; L_ML = 2304; L_O = 4096
LDS_ATTN = L_O + 8 * 2048

def gen_attn(a):
    name = 'attn_kernel'
    begin(a, name)
    a('s_cmp_ge_u32 s2, 256'); a('s_cbranch_scc1 A_end')
    a('s_load_dwordx4 s[4:7], s[0:1], 8')
    a('s_load_dwordx2 s[8:9], s[0:1], 0')
    a('s_load_dwordx2 s[10:11], s[0:1], 24')
    a('s_load_dwordx4 s[36:39], s[0:1], 48')
    a('s_load_dwordx4 s[40:43], s[0:1], 80')
    a('v_and_b32 v1, 63, v0'); a('v_lshrrev_b32 v2, 6, v0'); a('v_readfirstlane_b32 s3, v2')
    a('s_and_b32 s14, s2, 7'); a('s_lshr_b32 s15, s2, 3')
    a('s_waitcnt lgkmcnt(0)')
    srd(a, 16, 4, 5, 0x8000000); srd(a, 20, 6, 7, 0x8000000); srd(a, 24, 42, 43, WS_SIZE)
    srd(a, 44, 8, 9, 1024); srd(a, 48, 10, 11, 4194304); srd(a, 52, 36, 37, 1835008); srd(a, 56, 38, 39, 1835008); srd(a, 60, 40, 41, 256)
    HB = 16
    a('v_lshlrev_b32 v8, 4, v1')
    a(f'buffer_load_dwordx4 v[{HB+16}:{HB+19}], v8, s[44:47], 0 offen')
    a('v_lshlrev_b32 v9, 1, v0')
    a(f'buffer_load_ushort v{HB+20}, v9, s[44:47], 0 offen')
    a('v_lshlrev_b32 v8, 13, v0'); a('s_lshl_b32 s30, s14, 10'); a('s_lshl_b32 s31, s15, 5'); a('s_add_u32 s30, s30, s31')
    a(f'buffer_load_dwordx4 v[{HB}:{HB+3}], v8, s[48:51], s30 offen')
    a(f'buffer_load_dwordx4 v[{HB+4}:{HB+7}], v8, s[48:51], s30 offen offset:16')
    a('s_mul_i32 s64, s14, 28'); a('s_add_u32 s64, s64, s15'); a('s_lshl_b32 s31, s64, 4')
    a('s_cmp_ge_u32 s2, 224'); a('s_cselect_b32 s31, 0x7f000000, s31')
    a('s_mov_b32 s65, 3584'); a('v_mul_lo_u32 v9, v0, s65')
    a(f'buffer_load_dwordx4 v[{HB+8}:{HB+11}], v9, s[52:55], s31 offen')
    a(f'buffer_load_dwordx4 v[{HB+12}:{HB+15}], v9, s[56:59], s31 offen')
    a('s_lshl_b32 s28, s14, 24'); a('s_lshl_b32 s29, s15, 19'); a('s_add_u32 s28, s28, s29')
    a('v_and_b32 v2, 15, v1'); a('v_lshrrev_b32 v3, 4, v1')
    a('v_and_b32 v4, 3, v2'); a('v_lshlrev_b32 v4, 2, v4'); a('v_lshrrev_b32 v5, 2, v2'); a('v_add_u32 v4, v4, v5')
    a('v_lshlrev_b32 v4, 8, v4'); a('v_lshlrev_b32 v5, 4, v3'); a('v_add_u32 v4, v4, v5')
    a('v_add_u32 v5, 4096, v4')
    a('v_lshlrev_b32 v6, 4, v1'); a('v_add_u32 v7, 4096, v6')
    KR = [64, 96]; VR = [128, 160]
    QF = 192; OA = 208; S = 240; P = 248; VT = 16
    M = 8; Lr = 9; T1 = 10; T2 = 11; T3 = 12; M2 = 13; AL = 14; TK = 15
    X = 48
    SOFF = [66, 67]
    def loadK(x):
        b = KR[x]
        for T in range(2):
            for j in range(4):
                r = b + 16 * T + 4 * j
                a(f'buffer_load_dwordx4 v[{r}:{r+3}], v{4+T}, s[16:19], s{SOFF[x]} offen offset:{64*j} nt')
    def loadV(x):
        b = VR[x]
        for e in range(8):
            r = b + 4 * e
            a(f'buffer_load_dwordx4 v[{r}:{r+3}], v{6+(e>>2)}, s[20:23], s{SOFF[x]} offen offset:{1024*(e&3)} nt')
    a('s_cmp_eq_u32 s3, 0'); a('s_cbranch_scc1 A_nopre')
    a('s_sub_u32 s30, s3, 1'); a('s_lshl_b32 s30, s30, 13'); a(f's_add_u32 s{SOFF[0]}, s28, s30'); a(f's_add_u32 s{SOFF[1]}, s{SOFF[0]}, {7*8192}')
    loadK(0); loadV(0); loadK(1); loadV(1)
    a('s_waitcnt vmcnt(32)')
    a('s_branch A_head')
    a.label('A_nopre')
    a('v_mov_b32 v8, 14'); a(f'v_mov_b32 v9, {L_TICK}'); a('ds_write_b32 v9, v8')
    a('s_waitcnt vmcnt(0)')
    a.label('A_head')
    xs = 48
    for k in range(4):
        a(f'v_lshlrev_b32 v{xs+2*k}, 16, v{HB+16+k}'); a(f'v_and_b32 v{xs+2*k+1}, 0xffff0000, v{HB+16+k}')
    s_ = 56; t1 = 57; t2 = 58; mean = 59; var = 60; d = 61; xt = 62
    a(f'v_add_f32 v{s_}, v{xs}, v{xs+1}')
    for k in range(2, 8): a(f'v_add_f32 v{s_}, v{s_}, v{xs+k}')
    wave_allreduce(a, 'v_add_f32', s_, t1, t2)
    a(f'v_mul_f32 v{mean}, 0x3b000000, v{s_}')
    a(f'v_sub_f32 v{d}, v{xs}, v{mean}'); a(f'v_mul_f32 v{var}, v{d}, v{d}')
    for k in range(1, 8):
        a(f'v_sub_f32 v{d}, v{xs+k}, v{mean}'); a(f'v_fmac_f32 v{var}, v{d}, v{d}')
    wave_allreduce(a, 'v_add_f32', var, t1, t2)
    a(f'v_mul_f32 v{var}, 0x3b000000, v{var}')
    bf16r(a, var, var); bf16r(a, mean, mean)
    a(f'v_add_f32 v{var}, 0x3727c5ac, v{var}'); bf16r(a, var, var)
    a(f'v_sqrt_f32 v{var}, v{var}'); bf16r(a, var, var)
    a(f'v_rcp_f32 v{t1}, v{var}')
    a(f'v_lshlrev_b32 v{xt}, 16, v{HB+20}')
    a(f'v_sub_f32 v{xt}, v{xt}, v{mean}'); bf16r(a, xt, xt)
    a(f'v_mul_f32 v{d}, v{xt}, v{t1}'); a(f'v_fma_f32 v{t2}, -v{d}, v{var}, v{xt}'); a(f'v_fma_f32 v{xt}, v{t2}, v{t1}, v{d}')
    bf16r(a, xt, xt)
    PR = 192
    for k in range(16):
        a(f'v_lshlrev_b32 v{PR+2*k}, 16, v{HB+k}'); a(f'v_and_b32 v{PR+2*k+1}, 0xffff0000, v{HB+k}')
        a(f'v_mul_f32 v{PR+2*k}, v{PR+2*k}, v{xt}'); a(f'v_mul_f32 v{PR+2*k+1}, v{PR+2*k+1}, v{xt}')
    for k in range(16):
        a(f'v_permlane32_swap_b32 v{PR+k}, v{PR+k+16}'); a(f'v_add_f32 v{PR+k}, v{PR+k}, v{PR+k+16}')
    for k in range(8):
        a(f'v_permlane16_swap_b32 v{PR+k}, v{PR+k+8}'); a(f'v_add_f32 v{PR+k}, v{PR+k}, v{PR+k+8}')
    for r in (1, 2, 4, 8):
        for k in range(8):
            a(f'v_add_f32_dpp v{PR+k}, v{PR+k}, v{PR+k} row_ror:{r} row_mask:0xf bank_mask:0xf')
    a('s_lshl_b32 s30, s3, 7'); a('v_lshlrev_b32 v10, 5, v3'); a('v_add_u32 v10, s30, v10')
    a('v_cmp_eq_u32 vcc, 0, v2'); a('s_and_saveexec_b64 s[68:69], vcc')
    a(f'ds_write_b128 v10, v[{PR}:{PR+3}] offset:{L_RED}'); a(f'ds_write_b128 v10, v[{PR+4}:{PR+7}] offset:{L_RED+16}')
    a('s_mov_b64 exec, s[68:69]')
    a('s_waitcnt lgkmcnt(0)'); a('s_barrier')
    a('s_cmp_lg_u32 s3, 0'); a('s_cbranch_scc1 A_wait_q')
    a('v_and_b32 v10, 31, v1'); a('v_lshlrev_b32 v10, 2, v10')
    for w in range(8): a(f'ds_read_b32 v{PR+w}, v10 offset:{L_RED+128*w}')
    a('s_waitcnt lgkmcnt(0)')
    for w in range(1, 8): a(f'v_add_f32 v{PR}, v{PR}, v{PR+w}')
    a(f'v_cvt_pk_bf16_f32 v{PR+1}, v{PR}, v{PR}')
    a(f'v_lshlrev_b32 v{PR+2}, 16, v{PR+1}')
    a('s_lshl_b32 s30, s14, 10'); a('s_lshl_b32 s31, s15, 5'); a('s_add_u32 s30, s30, s31'); a(f's_add_u32 s30, s30, {WS_Q}')
    a('v_lshlrev_b32 v11, 1, v1')
    a('v_cmp_gt_u32 vcc, 16, v1'); a('s_and_saveexec_b64 s[68:69], vcc')
    a(f'buffer_store_short v{PR+1}, v11, s[24:27], s30 offen sc1')
    a('s_mov_b64 exec, s[68:69]')
    a(f'v_mov_b32 v{PR+3}, 0')
    a(f'v_mov_b32_dpp v{PR+3}, v{PR+2} row_shl:8 row_mask:0xf bank_mask:0xf')
    g_ = PR + 2; u_ = PR + 3
    a(f'v_mul_f32 v{PR+4}, 0xbfb8aa3b, v{g_}'); a(f'v_exp_f32 v{PR+4}, v{PR+4}'); a(f'v_add_f32 v{PR+4}, 1.0, v{PR+4}')
    a(f'v_rcp_f32 v{PR+5}, v{PR+4}')
    a(f'v_mul_f32 v{PR+6}, v{g_}, v{PR+5}'); a(f'v_fma_f32 v{PR+7}, -v{PR+6}, v{PR+4}, v{g_}'); a(f'v_fma_f32 v{PR+6}, v{PR+7}, v{PR+5}, v{PR+6}')
    bf16r(a, PR + 6, PR + 6)
    a(f'v_mul_f32 v{PR+6}, v{PR+6}, v{u_}'); a(f'v_cvt_pk_bf16_f32 v{PR+6}, v{PR+6}, v{PR+6}')
    a('s_lshl_b32 s31, s64, 4'); a(f's_add_u32 s31, s31, {WS_H-32}')
    a('v_subrev_u32 v12, 16, v1'); a('v_cmp_gt_u32 vcc, 8, v12'); a('s_cmp_lt_u32 s2, 224'); a('s_cselect_b64 s[70:71], -1, 0'); a('s_and_b64 vcc, vcc, s[70:71]')
    a('s_and_saveexec_b64 s[68:69], vcc')
    a(f'buffer_store_short v{PR+6}, v11, s[24:27], s31 offen sc1')
    a('s_mov_b64 exec, s[68:69]')
    a('s_waitcnt vmcnt(0)')
    a('s_lshl_b32 s30, s14, 5'); a('s_add_u32 s31, s30, s15'); a('v_mov_b32 v12, s31'); a('v_mov_b32 v13, 1')
    a('s_mov_b64 exec, 1')
    a('buffer_store_byte v13, v12, s[60:63], 0 offen sc1')
    a('s_mov_b64 exec, -1')
    a('v_and_b32 v12, 7, v1'); a('v_lshlrev_b32 v12, 2, v12')
    a('s_mov_b32 s72, 0')
    a.label('A_poll')
    a('buffer_load_dword v13, v12, s[60:63], s30 offen sc1')
    a('s_add_u32 s72, s72, 1')
    a('s_waitcnt vmcnt(0)')
    a('v_cmp_ne_u32 vcc, 0x01010101, v13')
    a('s_cmp_ge_u32 s72, 0x100000'); a('s_cbranch_scc1 A_pollend')
    a('s_cbranch_vccnz A_poll')
    a.label('A_pollend')
    a('s_lshl_b32 s30, s14, 10'); a(f's_add_u32 s30, s30, {WS_Q}')
    a(f'buffer_load_dwordx4 v[{PR}:{PR+3}], v6, s[24:27], s30 offen sc1')
    a('s_waitcnt vmcnt(0)')
    a(f'ds_write_b128 v6, v[{PR}:{PR+3}] offset:{L_Q}')
    a('s_waitcnt lgkmcnt(0)')
    a.label('A_wait_q')
    a('s_barrier')
    a('v_and_b32 v10, 3, v2'); a('v_lshlrev_b32 v10, 8, v10'); a('v_lshlrev_b32 v11, 4, v3'); a('v_add_u32 v10, v10, v11')
    for j in range(4): a(f'ds_read_b128 v[{QF+4*j}:{QF+4*j+3}], v10 offset:{L_Q+64*j}')
    a('s_mov_b32 s32, 0x05040100'); a('s_mov_b32 s33, 0x07060302'); a(f's_mov_b32 s34, {LOG2E:#x}'); a(f's_mov_b32 s35, {SCALE:#x}')
    a(f'v_mov_b32 v{M}, 0xff800000'); a(f'v_mov_b32 v{Lr}, 0')
    for k in range(32): a(f'v_mov_b32 v{OA+k}, 0')
    a(f'v_mov_b32 v56, {L_TICK}'); a('v_mov_b32 v57, 1')
    a('v_cmp_gt_u32 vcc, 4, v2')
    a('s_waitcnt lgkmcnt(0)')
    for k in range(16): a(f'v_cndmask_b32 v{QF+k}, 0, v{QF+k}, vcc')

    def ticket_issue():
        a('s_mov_b64 exec, 1'); a(f'ds_add_rtn_u32 v{TK}, v56, v57'); a('s_mov_b64 exec, -1')
    def ticket_get(x):
        a('s_waitcnt lgkmcnt(0)'); a(f'v_readfirstlane_b32 s73, v{TK}')
        a('s_lshl_b32 s74, s73, 13'); a(f's_add_u32 s{SOFF[x]}, s28, s74')
        a('s_cmp_ge_u32 s73, 64')
    def qk(x):
        b = KR[x]
        for T in range(2):
            for j in range(4):
                r = b + 16 * T + 4 * j
                c = '0' if j == 0 else f'v[{S+4*T}:{S+4*T+3}]'
                a(f'v_mfma_f32_16x16x32_bf16 v[{S+4*T}:{S+4*T+3}], v[{r}:{r+3}], v[{QF+4*j}:{QF+4*j+3}], {c}')
    def softmax():
        for k in range(4):
            a(f'v_cvt_pk_bf16_f32 v{T1}, v{S+2*k}, v{S+2*k+1}')
            a(f'v_lshlrev_b32 v{T2}, 16, v{T1}'); a(f'v_and_b32 v{T3}, 0xffff0000, v{T1}')
            a(f'v_mul_f32 v{T2}, s35, v{T2}'); a(f'v_mul_f32 v{T3}, s35, v{T3}')
            a(f'v_cvt_pk_bf16_f32 v{T1}, v{T2}, v{T3}')
            a(f'v_lshlrev_b32 v{X+2*k}, 16, v{T1}'); a(f'v_and_b32 v{X+2*k+1}, 0xffff0000, v{T1}')
        a(f'v_max3_f32 v{T1}, v{X}, v{X+1}, v{X+2}'); a(f'v_max3_f32 v{T1}, v{T1}, v{X+3}, v{X+4}')
        a(f'v_max3_f32 v{T1}, v{T1}, v{X+5}, v{X+6}'); a(f'v_max3_f32 v{T1}, v{T1}, v{X+7}, v{M}')
        xrow_reduce(a, 'v_max_f32', T1, T2)
        a(f'v_sub_f32 v{AL}, v{M}, v{T1}'); a(f'v_mul_f32 v{AL}, s34, v{AL}'); a(f'v_exp_f32 v{AL}, v{AL}')
        a(f'v_mov_b32 v{M}, v{T1}'); a(f'v_mul_f32 v{M2}, s34, v{T1}')
        for k in range(8):
            a(f'v_fma_f32 v{X+k}, v{X+k}, s34, -v{M2}'); a(f'v_exp_f32 v{X+k}, v{X+k}')
        a(f'v_mul_f32 v{Lr}, v{Lr}, v{AL}')
        for k in range(8): a(f'v_add_f32 v{Lr}, v{Lr}, v{X+k}')
        for k in range(4): a(f'v_cvt_pk_bf16_f32 v{P+k}, v{X+2*k}, v{X+2*k+1}')
        for k in range(32): a(f'v_mul_f32 v{OA+k}, v{OA+k}, v{AL}')
    def perms(x):
        vb = VR[x]
        for t in range(8):
            c = t >> 1
            for ii in range(4):
                a(f'v_perm_b32 v{VT+4*t+ii}, v{vb+4*(2*ii+1)+c}, v{vb+4*(2*ii)+c}, s{32+(t&1)}')
    def pv():
        for t in range(8):
            a(f'v_mfma_f32_16x16x32_bf16 v[{OA+4*t}:{OA+4*t+3}], v[{VT+4*t}:{VT+4*t+3}], v[{P}:{P+3}], v[{OA+4*t}:{OA+4*t+3}]')
    a('s_cmp_lg_u32 s3, 0'); a('s_cbranch_scc1 A_loop')
    ticket_issue(); ticket_get(0); a('s_cbranch_scc1 A_done')
    loadK(0); loadV(0)
    ticket_issue(); ticket_get(1); a('s_cbranch_scc1 A_fullA')
    loadK(1); loadV(1)
    a.label('A_loop')
    for x in range(2):
        ticket_issue()
        a('s_waitcnt vmcnt(24)')
        qk(x)
        ticket_get(x); a(f's_cbranch_scc1 A_drain{"AB"[x]}')
        loadK(x)
        softmax()
        a('s_waitcnt vmcnt(24)')
        perms(x); loadV(x); pv()
    a('s_branch A_loop')
    for x in range(2):
        a.label(f'A_drain{"AB"[x]}')
        softmax()
        a('s_waitcnt vmcnt(0)')
        perms(x); pv()
        a.label(f'A_full{"BA"[x]}')
        a('s_waitcnt vmcnt(0)')
        qk(1 - x); softmax(); perms(1 - x); pv()
        a('s_branch A_done')
    a.label('A_done')
    xrow_reduce(a, 'v_add_f32', Lr, T2)
    a('s_lshl_b32 s30, s3, 4'); a('v_lshlrev_b32 v16, 2, v2'); a('v_add_u32 v16, s30, v16')
    a('v_cmp_gt_u32 vcc, 4, v1'); a('s_and_saveexec_b64 s[68:69], vcc')
    a(f'ds_write_b32 v16, v{M} offset:{L_ML}')
    a('s_mov_b64 exec, s[68:69]')
    a('s_waitcnt lgkmcnt(0)'); a('s_barrier')
    a('v_and_b32 v17, 3, v2'); a('v_lshlrev_b32 v17, 2, v17')
    for w in range(8): a(f'ds_read_b32 v{20+w}, v17 offset:{L_ML+16*w}')
    a('s_waitcnt lgkmcnt(0)')
    a('v_max3_f32 v18, v20, v21, v22'); a('v_max3_f32 v18, v18, v23, v24'); a('v_max3_f32 v18, v18, v25, v26'); a('v_max_f32 v18, v18, v27')
    a(f'v_sub_f32 v{AL}, v{M}, v18'); a(f'v_mul_f32 v{AL}, s34, v{AL}'); a(f'v_exp_f32 v{AL}, v{AL}')
    a(f'v_mul_f32 v{Lr}, v{Lr}, v{AL}')
    for k in range(32): a(f'v_mul_f32 v{OA+k}, v{OA+k}, v{AL}')
    a('s_lshl_b32 s30, s3, 11'); a('v_lshlrev_b32 v19, 9, v2'); a('v_lshlrev_b32 v20, 7, v3'); a('v_add3_u32 v19, v19, v20, s30')
    a('v_cmp_gt_u32 vcc, 4, v2'); a('s_and_saveexec_b64 s[68:69], vcc')
    for t in range(8):
        for r in range(4):
            a(f'ds_write_b32 v19, v{OA+4*t+r} offset:{L_O+(8*r+t)*4}')
    a('s_mov_b64 exec, s[68:69]')
    a('v_cmp_gt_u32 vcc, 4, v1'); a('s_and_saveexec_b64 s[68:69], vcc')
    a(f'ds_write_b32 v16, v{Lr} offset:{L_ML+128}')
    a('s_mov_b64 exec, s[68:69]')
    a('s_waitcnt lgkmcnt(0)'); a('s_barrier')
    a('v_lshlrev_b32 v19, 2, v0')
    for w in range(8): a(f'ds_read_b32 v{20+w}, v19 offset:{L_O+2048*w}')
    a('s_waitcnt lgkmcnt(0)')
    for w in range(1, 8): a(f'v_add_f32 v20, v20, v{20+w}')
    a('v_lshrrev_b32 v21, 7, v0'); a('s_lshl_b32 s30, s14, 2'); a('v_add_u32 v21, s30, v21'); a('v_lshlrev_b32 v21, 5, v21'); a('v_add_u32 v21, s15, v21')
    a('v_lshlrev_b32 v21, 9, v21'); a('v_and_b32 v22, 127, v0'); a('v_lshlrev_b32 v22, 2, v22'); a('v_add_u32 v21, v21, v22'); a(f'v_add_u32 v21, {WS_O}, v21')
    a('buffer_store_dword v20, v21, s[24:27], 0 offen')
    a('s_cmp_lg_u32 s3, 0'); a('s_cbranch_scc1 A_end')
    for w in range(8): a(f'ds_read_b32 v{20+w}, v17 offset:{L_ML+128+16*w}')
    a('s_waitcnt lgkmcnt(0)')
    for w in range(1, 8): a(f'v_add_f32 v20, v20, v{20+w}')
    a('v_mov_b32 v19, v20')
    a('s_lshl_b32 s30, s14, 2'); a('v_add_u32 v21, s30, v1'); a('v_lshlrev_b32 v21, 5, v21'); a('v_add_u32 v21, s15, v21'); a('v_lshlrev_b32 v21, 3, v21')
    a(f'v_add_u32 v21, {WS_ML}, v21')
    a('v_cmp_gt_u32 vcc, 4, v1'); a('s_and_saveexec_b64 s[68:69], vcc')
    a('buffer_store_dwordx2 v[18:19], v21, s[24:27], 0 offen')
    a.label('A_end')
    a('s_endpgm')
    return name

def main(out):
    txt = HEADER
    txt += f'; @launch kernel=attn_kernel grid=(256,1,1) block=(512,1,1) lds={LDS_ATTN}\n'
    txt += '; @launch kernel=final_kernel grid=(368,1,1) block=(256,1,1) lds=6144\n'
    txt += '.amdgcn_target "amdgcn-amd-amdhsa--gfx950"\n.text\n'
    for g in (gen_attn, gen_final):
        a = Asm()
        n = g(a)
        txt += a.text() + kd(n, a.max_v + 1, max(a.max_s + 1, 16))
    open(out, 'w').write(txt)

if __name__ == '__main__':
    main(sys.argv[1] if len(sys.argv) > 1 else f'cdna_kernels/{NAME}.s')
```
